```python
import torch

def _softmax(x, axis=-1):
    return torch.softmax(x, dim=axis)
def _gelu(x):
    return torch.nn.functional.gelu(x, approximate="tanh")
def _silu(x):
    return torch.nn.functional.silu(x)
def _sigmoid(x):
    return torch.sigmoid(x)
def _layernorm(x, axis=-1, eps=1e-5):
    m = x.mean(dim=axis, keepdim=True)
    v = x.var(dim=axis, keepdim=True, unbiased=False)
    return (x - m) / torch.sqrt(v + eps)
def _scatter_add(tgt, idx, src, axis=0):
    return tgt.clone().index_add_(axis, idx, src)
def _segment_sum(src, seg, n):
    out = torch.zeros((n,) + src.shape[1:], dtype=src.dtype)
    return out.index_add_(0, seg, src)
def _pad(x, pw):
    flat = tuple(v for pair in reversed(pw) for v in pair)
    return torch.nn.functional.pad(x, flat)

kernel_name = 'interleave_layers__softmax_full_mha__dense_activation_silu__prompt'

def setup_inputs():

    _w = (lambda a: (lambda t: t.to(torch.bfloat16) if t.is_floating_point() else t)(torch.as_tensor(a)))
    def _A_setup():
        B, S, D = 1, 2048, 448
        return {
            "x": _w((lambda *s: torch.randn(*s, dtype=torch.bfloat16) * 0.05)(B, S, D)),
            "wqkv": _w((lambda *s: torch.randn(*s, dtype=torch.bfloat16) * 0.05)(D, 3 * D)),
            "wo": _w((lambda *s: torch.randn(*s, dtype=torch.bfloat16) * 0.05)(D, D)),
        }
    _A_in = _A_setup()

    def _B_setup():
        B, S, D, F = 1, 2048, 448, 1792
        return {
            "x": _w((lambda *s: torch.randn(*s, dtype=torch.bfloat16) * 0.05)(B, S, D)),
            "w1": _w((lambda *s: torch.randn(*s, dtype=torch.bfloat16) * 1.6)(D, F) * (D ** -0.5)),
            "w2": _w((lambda *s: torch.randn(*s, dtype=torch.bfloat16) * 0.2)(F, D) * (F ** -0.5)),
        }
    _B_in = _B_setup()

    return {
        "A_x": _A_in["x"],
        "A_wqkv": _A_in["wqkv"],
        "A_wo": _A_in["wo"],
        "B_x": _B_in["x"],
        "B_w1": _B_in["w1"],
        "B_w2": _B_in["w2"],
    }

def reference(A_x, A_wqkv, A_wo, B_x, B_w1, B_w2):
    def _A_ref(x, wqkv, wo):
        B, S, D = x.shape
        H = 16; Dh = D // H
        qkv = (lambda x, *d: x.permute(*d))((x @ wqkv).reshape(B, S, 3, H, Dh), 2, 0, 3, 1, 4)
        q, k, v = qkv[0], qkv[1], qkv[2]
        scale = Dh ** -0.5
        scores = torch.einsum("bhqd,bhkd->bhqk", q, k) * scale
        p = _softmax(scores, axis=-1)
        o = torch.einsum("bhqk,bhkd->bhqd", p, v)
        return (lambda x, *d: x.permute(*d))(o, 0, 2, 1, 3).reshape(B, S, D) @ wo

    def _B_ref(x, w1, w2):
        h = torch.einsum("bsd,df->bsf", x, w1)
        h = _silu(h)
        out = torch.einsum("bsf,fd->bsd", h, w2)
        return out

    x = A_x
    x = x + _A_ref(_layernorm(x, axis=-1), A_wqkv, A_wo)
    x = x + _B_ref(_layernorm(x, axis=-1), B_w1, B_w2)
    x = x + _A_ref(_layernorm(x, axis=-1), A_wqkv, A_wo)
    x = x + _B_ref(_layernorm(x, axis=-1), B_w1, B_w2)
    return x
```

```python
S_TOK = 2048; D = 448; NH = 16; DH = 28; F = 1792
KSD = 28
WQKV_F = 0x0000000
WO_F   = 0x0150000
W1_F   = 0x01C0000
W2_F   = 0x0348000
X_F    = 0x0500000; X_STRIDE = 0x1C0000
ST     = 0x0C00000; ST_STRIDE = 0x40000
NRM    = 0x0D00000; NRM_STRIDE = 0x2000
QKV_F  = 0x0E00000; QKV_STRIDE = 0x600000
O_F    = 0x1A00000; O_STRIDE = 0x200000
H_F    = 0x1E00000; H_STRIDE = 0x700000
WS_BYTES = 0x10000000

import math, struct
def f32(x):
    return struct.unpack('<I', struct.pack('<f', x))[0]
def hx(x): return '0x%x' % (x & 0xffffffff)

class Em:
    def __init__(self): self.l = []
    def __call__(self, s=''):
        for ln in s.split('\n'):
            ln = ln.rstrip()
            if ln.strip(): self.l.append('  ' + ln.strip() if not ln.strip().endswith(':') else ln.strip())
    def lab(self, n): self.l.append(n + ':')
    def text(self): return '\n'.join(self.l) + '\n'

def vr(a, n=1, p='v'):
    return '%s%d' % (p, a) if n == 1 else '%s[%d:%d]' % (p, a, a+n-1)
def ar(a, n=1): return vr(a, n, 'a')
def sr(a, n=1): return vr(a, n, 's')

def mfma(e, d, a, b, c):
    e('v_mfma_f32_32x32x16_bf16 %s, %s, %s, %s' % (d, a, b, c))

def srd(e, s, lo, hi, nbytes):
    e('s_mov_b32 s%d, s%d' % (s, lo))
    e('s_and_b32 s%d, s%d, 0xffff' % (s+1, hi))
    e('s_mov_b32 s%d, %s' % (s+2, hx(nbytes)))
    e('s_mov_b32 s%d, 0x20000' % (s+3))

def kd(name, vgpr, accum, sgpr=96):
    return ('.p2align 6\n.amdhsa_kernel %s\n  .amdhsa_next_free_vgpr %d\n  .amdhsa_next_free_sgpr %d\n  .amdhsa_accum_offset %d\n'
            '  .amdhsa_group_segment_fixed_size 0\n  .amdhsa_kernarg_size 72\n  .amdhsa_user_sgpr_count 2\n'
            '  .amdhsa_user_sgpr_kernarg_segment_ptr 1\n  .amdhsa_system_sgpr_workgroup_id_x 1\n'
            '  .amdhsa_float_denorm_mode_32 3\n.end_amdhsa_kernel\n') % (name, vgpr, sgpr, accum)
def entry(name):
    return '.globl %s\n.p2align 8\n.type %s,@function\n%s:\n' % (name, name, name)

def xhalf_sum(e, v, t):
    e('v_mov_b32 v%d, v%d' % (t, v))
    e('s_nop 1')
    e('v_permlane32_swap_b32 v%d, v%d' % (v, t))
    e('s_nop 1')
    e('v_add_f32 v%d, v%d, v%d' % (v, v, t))

def row16_max(e, v, t):
    for r in (8, 4, 2, 1):
        e('s_nop 1')
        e('v_max_f32_dpp v%d, v%d, v%d row_ror:%d row_mask:0xf bank_mask:0xf' % (v, v, v, r))

def stats_issue(e, vdst, vtok8, s_srd, s_tmp, s_stbase):
    for u in range(7):
        if u == 0:
            e('s_mov_b32 s%d, s%d' % (s_tmp, s_stbase))
        else:
            e('s_add_u32 s%d, s%d, 32768' % (s_tmp, s_tmp))
        e('buffer_load_dwordx2 %s, v%d, %s, s%d offen' % (vr(vdst+2*u, 2), vtok8, sr(s_srd, 4), s_tmp))

def stats_finish(e, vsrc, vout, t):
    for u in range(1, 7):
        e('v_add_f32 v%d, v%d, v%d' % (vsrc, vsrc, vsrc+2*u))
        e('v_add_f32 v%d, v%d, v%d' % (vsrc+1, vsrc+1, vsrc+2*u+1))
    e('v_mov_b32 v%d, v%d' % (vsrc+2, vsrc))
    e('v_mov_b32 v%d, v%d' % (vsrc+3, vsrc+1))
    e('s_nop 1')
    e('v_permlane32_swap_b32 v%d, v%d' % (vsrc, vsrc+2))
    e('v_permlane32_swap_b32 v%d, v%d' % (vsrc+1, vsrc+3))
    e('s_nop 1')
    e('v_add_f32 v%d, v%d, v%d' % (vsrc, vsrc, vsrc+2))
    e('v_add_f32 v%d, v%d, v%d' % (vsrc+1, vsrc+1, vsrc+3))
    inv = hx(f32(1.0/D))
    e('v_mul_f32 v%d, %s, v%d' % (vsrc, inv, vsrc))
    e('v_mul_f32 v%d, %s, v%d' % (vsrc+1, inv, vsrc+1))
    e('v_fma_f32 v%d, -v%d, v%d, v%d' % (vsrc+1, vsrc, vsrc, vsrc+1))
    e('v_max_f32 v%d, 0, v%d' % (vsrc+1, vsrc+1))
    e('v_add_f32 v%d, %s, v%d' % (vsrc+1, hx(f32(1e-5)), vsrc+1))
    e('v_rsq_f32 v%d, v%d' % (vout, vsrc+1))
    e('s_nop 0')
```

```python
from common import *
TBOUND2 = 64.0*64.0

def gen_attn(prefix='attn'):
    e = Em()
    P = 'L' + prefix
    SA, SB = 16, 32
    PA, PB = 48, 56
    O = 64
    QA = 0
    KV = 32
    e.lab(P + '_body')
    e('s_cmp_ge_u32 s2, 256')
    e('s_cbranch_scc1 %s_end' % P)
    e('s_load_dwordx2 s[4:5], s[0:1], 64')
    e('v_and_b32 v1, 63, v0')
    e('v_lshrrev_b32 v6, 6, v0')
    e('v_and_b32 v2, 31, v1')
    e('v_lshrrev_b32 v3, 5, v1')
    e('v_readfirstlane_b32 s24, v6')
    e('v_lshlrev_b32 v4, 4, v1')
    e('s_and_b32 s25, s2, 7')
    e('s_lshl_b32 s25, s25, 1')
    e('s_bfe_u32 s26, s2, 0x10003')
    e('s_add_u32 s25, s25, s26')
    e('s_lshr_b32 s26, s2, 4')
    e('s_waitcnt lgkmcnt(0)')
    srd(e, 8, 4, 5, WS_BYTES)
    e('s_mul_i32 s27, s3, %s' % hx(NRM_STRIDE))
    e('s_add_u32 s27, s27, %s' % hx(NRM))
    e('s_lshl_b32 s28, s25, 8')
    e('s_add_u32 s27, s27, s28')
    e('s_lshl_b32 s28, s26, 4')
    e('s_add_u32 s28, s28, s27')
    e('s_add_u32 s27, s27, 0x1000')
    e('v_lshlrev_b32 v5, 2, v1')
    e('v_and_b32 v7, 12, v5')
    e('buffer_load_dword v8, v5, s[8:11], s27 offen')
    e('buffer_load_dword v9, v7, s[8:11], s28 offen')
    e('s_mul_i32 s29, s3, %s' % hx(QKV_STRIDE))
    e('s_add_u32 s29, s29, %s' % hx(QKV_F))
    e('s_lshl_b32 s30, s25, 17')
    e('s_add_u32 s29, s29, s30')
    e('s_lshl_b32 s30, s26, 13')
    e('s_add_u32 s30, s30, s29')
    for q in range(4):
        for f in range(2):
            off = (q*2+f)*1024
            if off == 4096: e('s_add_u32 s30, s30, 4096')
            e('buffer_load_dwordx4 %s, v4, s[8:11], s30 offen offset:%d' % (ar(QA+8*q+4*f, 4), off % 4096))
    e('s_lshl_b32 s31, s24, 15')
    e('s_add_u32 s31, s31, s29')
    e('s_add_u32 s32, s31, 0x400000')
    e('s_add_u32 s31, s31, 0x200000')
    def kvload(b):
        r = KV+16*b
        e('buffer_load_dwordx4 %s, v4, s[8:11], s31 offen' % ar(r, 4))
        e('buffer_load_dwordx4 %s, v4, s[8:11], s31 offen offset:1024' % ar(r+4, 4))
        e('buffer_load_dwordx4 %s, v4, s[8:11], s32 offen' % ar(r+8, 4))
        e('buffer_load_dwordx4 %s, v4, s[8:11], s32 offen offset:1024' % ar(r+12, 4))
        e('s_add_u32 s31, s31, 2048')
        e('s_add_u32 s32, s32, 2048')
    for b in range(3): kvload(b)
    for r in range(64): e('v_mov_b32 v%d, 0' % (O+r))
    for r in range(8): e('v_mov_b32 v%d, 0' % (PB+r))
    for r in range(8): e('v_accvgpr_write_b32 a%d, 0' % (KV+48+8+r))
    e('s_waitcnt vmcnt(20)')
    row16_max(e, 8, 10)
    row16_max(e, 9, 10)
    e('s_nop 1')
    e('v_readlane_b32 s34, v8, 0')
    e('v_readlane_b32 s35, v8, 16')
    e('v_readlane_b32 s36, v8, 32')
    e('v_readlane_b32 s37, v8, 48')
    e('v_readlane_b32 s38, v9, 0')
    e('s_nop 3')
    e('s_max_u32 s34, s34, s35')
    e('s_max_u32 s36, s36, s37')
    e('s_max_u32 s34, s34, s36')
    e('v_mov_b32 v10, s34')
    e('v_mul_f32 v10, s38, v10')
    e('v_mov_b32 v11, %s' % hx(f32(TBOUND2)))
    e('v_cmp_le_f32 vcc, v10, v11')
    e('s_nop 4')
    e('s_cbranch_vccz %s_slow' % P)
    e('s_waitcnt vmcnt(8)')
    mfma(e, vr(SA, 16), ar(KV, 4), ar(QA, 4), '0')
    mfma(e, vr(SA, 16), ar(KV+4, 4), ar(QA+4, 4), vr(SA, 16))
    e('s_mov_b32 s33, 4')
    e('s_nop 7')
    e('s_nop 3')
    e('.p2align 6')
    e.lab(P + '_loop')
    for b in range(4):
        for q in range(4):
            t = 4*b+q
            Sc, Sn = (SA, SB) if t % 2 == 0 else (SB, SA)
            Pc, Pp = (PA, PB) if t % 2 == 0 else (PB, PA)
            nb, nq = (b, q+1) if q < 3 else ((b+1) & 3, 0)
            pb, pq = (b, q-1) if q > 0 else ((b-1) & 3, 3)
            kn = KV+16*nb; vp = KV+16*pb+8
            m0 = lambda: mfma(e, vr(Sn, 16), ar(kn, 4), ar(QA+8*nq, 4), '0')
            m1 = lambda: mfma(e, vr(Sn, 16), ar(kn+4, 4), ar(QA+8*nq+4, 4), vr(Sn, 16))
            pv0 = lambda: mfma(e, vr(O+16*pq, 16), ar(vp, 4), vr(Pp, 4), vr(O+16*pq, 16))
            pv1 = lambda: mfma(e, vr(O+16*pq, 16), ar(vp+4, 4), vr(Pp+4, 4), vr(O+16*pq, 16))
            if q == 3: e('s_waitcnt vmcnt(8)')
            ms = [m0, pv0, m1, pv1]
            for k in range(4):
                ms[k]()
                if k == 3 and q == 0:
                    kvload((b+3) & 3)
                for i in range(4):
                    e('v_exp_f32 v%d, v%d' % (Sc+4*k+i, Sc+4*k+i))
                if k > 0:
                    e('v_cvt_pk_bf16_f32 v%d, v%d, v%d' % (Pc+2*k-2, Sc+4*k-4, Sc+4*k-3))
                    e('v_cvt_pk_bf16_f32 v%d, v%d, v%d' % (Pc+2*k-1, Sc+4*k-2, Sc+4*k-1))
            e('v_cvt_pk_bf16_f32 v%d, v%d, v%d' % (Pc+6, Sc+12, Sc+13))
            e('v_cvt_pk_bf16_f32 v%d, v%d, v%d' % (Pc+7, Sc+14, Sc+15))
    e('s_sub_u32 s33, s33, 1')
    e('s_cmp_lg_u32 s33, 0')
    e('s_cbranch_scc1 %s_loop' % P)
    e('s_nop 1')
    mfma(e, vr(O+48, 16), ar(KV+48+8, 4), vr(PB, 4), vr(O+48, 16))
    mfma(e, vr(O+48, 16), ar(KV+48+12, 4), vr(PB+4, 4), vr(O+48, 16))
    e('s_waitcnt vmcnt(0)')
    e('s_nop 7')
    e('s_nop 7')
    e.lab(P + '_reduce')
    e('s_lshl_b32 s34, s24, 14')
    e('v_add_u32 v5, s34, v4')
    for q in range(4):
        for g in range(4):
            e('ds_write_b128 v5, %s offset:%d' % (vr(O+16*q+4*g, 4), (q*4+g)*1024))
    e('s_waitcnt lgkmcnt(0)')
    e('s_barrier')
    e('s_lshl_b32 s34, s24, 12')
    e('v_add_u32 v5, s34, v4')
    for src in range(4):
        for g in range(4):
            e('ds_read_b128 %s, v5 offset:%d' % (vr(O+16*src+4*g, 4), src*16384+g*1024))
    e('s_waitcnt lgkmcnt(0)')
    for r in range(16):
        e('v_add_f32 v%d, v%d, v%d' % (O+r, O+r, O+16+r))
        e('v_add_f32 v%d, v%d, v%d' % (O+32+r, O+32+r, O+48+r))
    for r in range(16):
        e('v_add_f32 v%d, v%d, v%d' % (O+r, O+r, O+32+r))
    e('v_mov_b32 v8, v%d' % (O+12))
    e('v_mov_b32 v9, v%d' % (O+12))
    e('s_nop 1')
    e('v_permlane32_swap_b32 v8, v9')
    e('s_nop 1')
    e('v_rcp_f32 v9, v9')
    e('s_nop 0')
    for r in range(16):
        e('v_mul_f32 v%d, v%d, v9' % (O+r, O+r))
    for qq in range(8):
        e('v_cvt_pk_bf16_f32 v%d, v%d, v%d' % (16+qq, O+2*qq, O+2*qq+1))
    e('s_mul_i32 s35, s3, %s' % hx(O_STRIDE))
    e('s_add_u32 s35, s35, %s' % hx(O_F))
    e('s_lshl_b32 s36, s26, 2')
    e('s_add_u32 s36, s36, s24')
    e('s_lshl_b32 s36, s36, 5')
    e('s_lshl_b32 s37, s25, 1')
    e('s_add_u32 s36, s36, s37')
    e('s_lshl_b32 s36, s36, 10')
    e('s_add_u32 s35, s35, s36')
    e('buffer_store_dwordx4 %s, v4, s[8:11], s35 offen' % vr(16, 4))
    e('buffer_store_dwordx4 %s, v4, s[8:11], s35 offen offset:1024' % vr(20, 4))
    e.lab(P + '_end')
    e('s_endpgm')
    e.lab(P + '_slow')
    M = 56
    for q in range(4): e('v_mov_b32 v%d, %s' % (M+q, hx(f32(-3.0e38))))
    e('s_waitcnt vmcnt(0)')
    e('s_sub_u32 s31, s31, %d' % (3*2048))
    e('s_sub_u32 s32, s32, %d' % (3*2048))
    e('s_mov_b32 s33, 16')
    e.lab(P + '_sloop')
    kvload(0)
    e('s_waitcnt vmcnt(0)')
    for q in range(4):
        mfma(e, vr(SA, 16), ar(KV, 4), ar(QA+8*q, 4), '0')
        mfma(e, vr(SA, 16), ar(KV+4, 4), ar(QA+8*q+4, 4), vr(SA, 16))
        e('s_nop 7'); e('s_nop 7')
        e('v_max_f32 v8, v%d, v%d' % (SA, SA+1))
        for r in range(2, 16): e('v_max_f32 v8, v8, v%d' % (SA+r))
        e('v_mov_b32 v9, v8')
        e('s_nop 1')
        e('v_permlane32_swap_b32 v8, v9')
        e('s_nop 1')
        e('v_max_f32 v8, v8, v9')
        e('v_max_f32 v8, v8, v%d' % (M+q))
        e('v_sub_f32 v9, v%d, v8' % (M+q))
        e('v_exp_f32 v9, v9')
        e('v_mov_b32 v%d, v8' % (M+q))
        for r in range(16): e('v_sub_f32 v%d, v%d, v8' % (SA+r, SA+r))
        for r in range(16): e('v_exp_f32 v%d, v%d' % (SA+r, SA+r))
        for r in range(16): e('v_mul_f32 v%d, v%d, v9' % (O+16*q+r, O+16*q+r))
        for qq in range(8): e('v_cvt_pk_bf16_f32 v%d, v%d, v%d' % (PA+qq, SA+2*qq, SA+2*qq+1))
        e('s_nop 1')
        mfma(e, vr(O+16*q, 16), ar(KV+8, 4), vr(PA, 4), vr(O+16*q, 16))
        mfma(e, vr(O+16*q, 16), ar(KV+12, 4), vr(PA+4, 4), vr(O+16*q, 16))
        e('s_nop 7'); e('s_nop 7')
    e('s_sub_u32 s33, s33, 1')
    e('s_cmp_lg_u32 s33, 0')
    e('s_cbranch_scc1 %s_sloop' % P)
    e('s_lshl_b32 s34, s24, 9')
    e('s_add_u32 s34, s34, 65536')
    e('v_lshl_add_u32 v5, v2, 2, s34')
    for q in range(4): e('ds_write_b32 v5, v%d offset:%d' % (M+q, q*128))
    e('s_waitcnt lgkmcnt(0)')
    e('s_barrier')
    e('v_lshlrev_b32 v5, 2, v2')
    e('v_add_u32 v5, 65536, v5')
    for q in range(4):
        for src in range(4):
            e('ds_read_b32 v%d, v5 offset:%d' % (16+4*q+src, src*512+q*128))
    e('s_waitcnt lgkmcnt(0)')
    for q in range(4):
        e('v_max_f32 v8, v%d, v%d' % (16+4*q, 17+4*q))
        e('v_max_f32 v9, v%d, v%d' % (18+4*q, 19+4*q))
        e('v_max_f32 v8, v8, v9')
        e('v_sub_f32 v9, v%d, v8' % (M+q))
        e('v_exp_f32 v9, v9')
        e('s_nop 0')
        for r in range(16): e('v_mul_f32 v%d, v%d, v9' % (O+16*q+r, O+16*q+r))
    e('s_branch %s_reduce' % P)
    return e.text()
ATTN_VGPR = 128; ATTN_AGPR = 96; ATTN_LDS = 65536 + 2048
```

```python
from common import *

def gen_ksplit(kind):
    e = Em()
    P = 'L' + kind
    NKS = 32 if kind == 'wo' else 112
    KW = NKS // 4
    RING = min(KW, 14)
    ACC = 16
    e.lab(P + '_body')
    e('s_cmp_ge_u32 s2, 224')
    e('s_cbranch_scc1 %s_end' % P)
    e('s_load_dwordx2 s[4:5], s[0:1], 64')
    e('s_load_dwordx2 s[6:7], s[0:1], 48')
    e('v_and_b32 v1, 63, v0')
    e('v_lshrrev_b32 v6, 6, v0')
    e('v_and_b32 v2, 31, v1')
    e('v_lshrrev_b32 v3, 5, v1')
    e('v_readfirstlane_b32 s24, v6')
    e('v_lshlrev_b32 v4, 4, v1')
    e('s_and_b32 s25, s2, 7')
    e('s_lshl_b32 s25, s25, 2')
    e('s_bfe_u32 s26, s2, 0x20003')
    e('s_add_u32 s25, s25, s26')
    e('s_lshr_b32 s26, s2, 5')
    e('s_waitcnt lgkmcnt(0)')
    srd(e, 8, 4, 5, WS_BYTES)
    WF = WO_F if kind == 'wo' else W2_F
    e('s_mul_i32 s27, s26, %d' % (2*NKS*1024))
    e('s_mul_i32 s28, s24, %d' % (KW*1024))
    e('s_add_u32 s27, s27, s28')
    e('s_add_u32 s27, s27, %s' % hx(WF))
    e('s_add_u32 s29, s27, %d' % (NKS*1024))
    AF, AS = (O_F, O_STRIDE) if kind == 'wo' else (H_F, H_STRIDE)
    e('s_mul_i32 s30, s3, %s' % hx(AS))
    e('s_add_u32 s30, s30, %s' % hx(AF))
    e('s_mul_i32 s31, s25, %d' % (2*NKS*1024))
    e('s_add_u32 s30, s30, s31')
    e('s_add_u32 s30, s30, s28')
    e('s_add_u32 s31, s30, %d' % (NKS*1024))
    e('s_lshr_b32 s32, s24, 1')
    e('s_and_b32 s33, s24, 1')
    e('s_lshl_b32 s34, s25, 1')
    e('s_add_u32 s34, s34, s33')
    e('s_lshl_b32 s35, s26, 1')
    e('s_add_u32 s35, s35, s32')
    xi_mul, xi_add = (2, 0) if kind == 'wo' else (2, 1)
    e('s_mul_i32 s36, s3, %s' % hx(2*X_STRIDE))
    e('s_add_u32 s36, s36, %s' % hx(X_F + xi_add*X_STRIDE))
    e('s_mul_i32 s37, s34, 28')
    e('s_lshl_b32 s38, s35, 1')
    e('s_add_u32 s37, s37, s38')
    e('s_lshl_b32 s37, s37, 10')
    e('s_add_u32 s36, s36, s37')
    RES = 80
    nextra = 2
    e('buffer_load_dwordx4 %s, v4, s[8:11], s36 offen' % vr(RES, 4))
    e('buffer_load_dwordx4 %s, v4, s[8:11], s36 offen offset:1024' % vr(RES+4, 4))
    STV = 96
    if kind == 'w2':
        e('s_mul_i32 s38, s3, %s' % hx(2*ST_STRIDE))
        e('s_add_u32 s38, s38, %s' % hx(ST + ST_STRIDE))
        e('s_lshl_b32 s39, s34, 8')
        e('s_add_u32 s38, s38, s39')
        e('v_lshlrev_b32 v5, 14, v3')
        e('v_lshl_add_u32 v5, v2, 3, v5')
        stats_issue(e, STV, 5, 8, 39, 38)
        nextra += 7
    def loads(u):
        slot = u % RING
        r = 16*slot
        off = (u % 4)*1024
        e('buffer_load_dwordx4 %s, v4, s[8:11], s27 offen offset:%d' % (ar(r, 4), off))
        e('buffer_load_dwordx4 %s, v4, s[8:11], s29 offen offset:%d' % (ar(r+4, 4), off))
        e('buffer_load_dwordx4 %s, v4, s[8:11], s30 offen offset:%d' % (ar(r+8, 4), off))
        e('buffer_load_dwordx4 %s, v4, s[8:11], s31 offen offset:%d' % (ar(r+12, 4), off))
        if u % 4 == 3:
            for s in (27, 29, 30, 31): e('s_add_u32 s%d, s%d, 4096' % (s, s))
    for u in range(RING): loads(u)
    issued = RING
    for u in range(KW):
        out = (issued - u - 1)*4
        e('s_waitcnt vmcnt(%d)' % out)
        r = 16*(u % RING)
        for i in range(2):
            for j in range(2):
                a = ACC+16*(2*i+j)
                mfma(e, vr(a, 16), ar(r+4*i, 4), ar(r+8+4*j, 4), '0' if u == 0 else vr(a, 16))
        if issued < KW:
            loads(issued); issued += 1
    e('s_nop 7'); e('s_nop 7')
    e('s_lshl_b32 s40, s24, 14')
    e('v_add_u32 v7, s40, v4')
    for t in range(4):
        for g in range(4):
            e('ds_write_b128 v7, %s offset:%d' % (vr(ACC+16*t+4*g, 4), (t*4+g)*1024))
    e('s_waitcnt lgkmcnt(0)')
    e('s_barrier')
    e('s_lshl_b32 s40, s24, 12')
    e('v_add_u32 v7, s40, v4')
    for src in range(4):
        for g in range(4):
            e('ds_read_b128 %s, v7 offset:%d' % (vr(ACC+16*src+4*g, 4), src*16384+g*1024))
    if kind == 'w2':
        stats_finish(e, STV, 90, 91)
    e('s_waitcnt lgkmcnt(0)')
    for r in range(16):
        e('v_add_f32 v%d, v%d, v%d' % (ACC+r, ACC+r, ACC+16+r))
        e('v_add_f32 v%d, v%d, v%d' % (ACC+32+r, ACC+32+r, ACC+48+r))
    for r in range(16):
        e('v_add_f32 v%d, v%d, v%d' % (ACC+r, ACC+r, ACC+32+r))
    for q in range(8):
        e('v_lshlrev_b32 v92, 16, v%d' % (RES+q))
        e('v_and_b32 v93, 0xffff0000, v%d' % (RES+q))
        if kind == 'w2':
            e('v_fma_f32 v%d, v%d, v90, v92' % (ACC+2*q, ACC+2*q))
            e('v_fma_f32 v%d, v%d, v90, v93' % (ACC+2*q+1, ACC+2*q+1))
        else:
            e('v_add_f32 v%d, v%d, v92' % (ACC+2*q, ACC+2*q))
            e('v_add_f32 v%d, v%d, v93' % (ACC+2*q+1, ACC+2*q+1))
    for q in range(8):
        e('v_cvt_pk_bf16_f32 v%d, v%d, v%d' % (RES+q, ACC+2*q, ACC+2*q+1))
    if kind == 'w2':
        e('s_cmp_eq_u32 s3, 1')
        e('s_cbranch_scc1 %s_final' % P)
    e('s_add_u32 s36, s36, %s' % hx(X_STRIDE))
    e('buffer_store_dwordx4 %s, v4, s[8:11], s36 offen' % vr(RES, 4))
    e('buffer_store_dwordx4 %s, v4, s[8:11], s36 offen offset:1024' % vr(RES+4, 4))
    e('v_mov_b32 v40, 0')
    e('v_mov_b32 v41, 0')
    for q in range(8):
        e('v_lshlrev_b32 v92, 16, v%d' % (RES+q))
        e('v_and_b32 v93, 0xffff0000, v%d' % (RES+q))
        e('v_add_f32 v40, v40, v92')
        e('v_fmac_f32 v41, v92, v92')
        e('v_add_f32 v40, v40, v93')
        e('v_fmac_f32 v41, v93, v93')
    xhalf_sum(e, 40, 44)
    xhalf_sum(e, 41, 44)
    sti = 1 if kind == 'wo' else 2
    e('s_mul_i32 s38, s3, %s' % hx(2*ST_STRIDE))
    e('s_add_u32 s38, s38, %s' % hx(ST + sti*ST_STRIDE))
    e('s_lshl_b32 s39, s35, 14')
    e('s_add_u32 s38, s38, s39')
    e('s_lshl_b32 s39, s34, 8')
    e('s_add_u32 s38, s38, s39')
    e('v_lshlrev_b32 v6, 3, v2')
    e('s_mov_b32 exec_hi, 0')
    e('buffer_store_dwordx2 v[40:41], v6, s[8:11], s38 offen')
    e('s_mov_b64 exec, -1')
    if kind == 'w2':
        e('s_branch %s_end' % P)
        e.lab(P + '_final')
        srd(e, 12, 6, 7, 2048*896)
        e('s_nop 0')
        for gp in range(2):
            e('v_permlane32_swap_b32 v%d, v%d' % (RES+4*gp, RES+4*gp+2))
            e('v_permlane32_swap_b32 v%d, v%d' % (RES+4*gp+1, RES+4*gp+3))
        e('v_mul_u32_u24 v6, 896, v2')
        e('v_lshl_add_u32 v6, v3, 4, v6')
        e('s_mul_i32 s38, s34, %d' % (32*896))
        e('s_lshl_b32 s39, s35, 6')
        e('s_add_u32 s38, s38, s39')
        e('s_nop 0')
        e('buffer_store_dwordx4 %s, v6, s[12:15], s38 offen' % vr(RES, 4))
        e('buffer_store_dwordx4 %s, v6, s[12:15], s38 offen offset:32' % vr(RES+4, 4))
    e.lab(P + '_end')
    e('s_endpgm')
    return e.text()
KS_VGPR = 128; KS_LDS = 65536
def ks_agpr(kind): return 16*(8 if kind == 'wo' else 14)

def gen_w1():
    e = Em()
    P = 'Lw1'
    ACC = 16
    WB = 80
    STV = 112
    e.lab(P + '_body')
    e('s_cmp_ge_u32 s2, 224')
    e('s_cbranch_scc1 %s_end' % P)
    e('s_load_dwordx2 s[4:5], s[0:1], 64')
    e('v_and_b32 v1, 63, v0')
    e('v_lshrrev_b32 v6, 6, v0')
    e('v_and_b32 v2, 31, v1')
    e('v_lshrrev_b32 v3, 5, v1')
    e('v_readfirstlane_b32 s24, v6')
    e('v_lshlrev_b32 v4, 4, v1')
    e('s_and_b32 s25, s2, 7')
    e('s_lshl_b32 s25, s25, 1')
    e('s_bfe_u32 s26, s2, 0x10003')
    e('s_add_u32 s25, s25, s26')
    e('s_lshr_b32 s26, s2, 4')
    e('s_lshl_b32 s27, s25, 2')
    e('s_add_u32 s27, s27, s24')
    e('s_waitcnt lgkmcnt(0)')
    srd(e, 8, 4, 5, WS_BYTES)
    e('s_mul_i32 s28, s3, %s' % hx(2*ST_STRIDE))
    e('s_add_u32 s28, s28, %s' % hx(ST + ST_STRIDE))
    e('s_lshl_b32 s29, s27, 8')
    e('s_add_u32 s28, s28, s29')
    e('v_lshlrev_b32 v5, 14, v3')
    e('v_lshl_add_u32 v5, v2, 3, v5')
    stats_issue(e, STV, 5, 8, 29, 28)
    e('s_mul_i32 s30, s26, 114688')
    e('s_lshl_b32 s31, s24, 12')
    e('s_add_u32 s30, s30, s31')
    e('s_add_u32 s30, s30, %s' % hx(W1_F))
    e('s_mul_i32 s32, s3, %s' % hx(2*X_STRIDE))
    e('s_add_u32 s32, s32, %s' % hx(X_F + X_STRIDE))
    e('s_mul_i32 s33, s27, 28672')
    e('s_add_u32 s32, s32, s33')
    for s in range(7):
        e('s_mov_b32 m0, s31')
        e('s_add_u32 s31, s31, 16384')
        for i in range(4):
            e('buffer_load_dwordx4 v4, s[8:11], s30 offen offset:%d lds' % (i*1024))
        e('s_add_u32 s30, s30, 16384')
        for i in range(4):
            e('buffer_load_dwordx4 %s, v4, s[8:11], s32 offen offset:%d' % (ar(16*s+4*i, 4), i*1024))
        e('s_add_u32 s32, s32, 4096')
    e('v_add_u32 v7, 57344, v4')
    def wread(ks):
        base = 'v4' if ks < 14 else 'v7'
        off = (ks % 14)*4096
        for t in range(4):
            e('ds_read_b128 %s, %s offset:%d' % (vr(WB+16*(ks & 1)+4*t, 4), base, off+t*1024))
    e('s_waitcnt vmcnt(48)')
    e('s_barrier')
    wread(0)
    for ks in range(28):
        if ks+1 < 28:
            if (ks+1) % 4 == 0:
                e('s_waitcnt vmcnt(%d)' % (8*(6-(ks+1)//4)))
                e('s_barrier')
            wread(ks+1)
            e('s_waitcnt lgkmcnt(4)')
        else:
            e('s_waitcnt lgkmcnt(0)')
        b = WB+16*(ks & 1)
        for t in range(4):
            mfma(e, vr(ACC+16*t, 16), vr(b+4*t, 4), ar(4*ks, 4), '0' if ks == 0 else vr(ACC+16*t, 16))
    RS = 126
    stats_finish(e, STV, RS, 127)
    e('v_mul_f32 v%d, %s, v%d' % (RS, hx(f32(-math.log2(math.e))), RS))
    e('s_mul_i32 s35, s3, %s' % hx(H_STRIDE))
    e('s_add_u32 s35, s35, %s' % hx(H_F))
    e('s_mul_i32 s36, s27, 112')
    e('s_lshl_b32 s37, s26, 3')
    e('s_add_u32 s36, s36, s37')
    e('s_lshl_b32 s36, s36, 10')
    e('s_add_u32 s35, s35, s36')
    for t in range(4):
        a = ACC+16*t
        for r in range(16): e('v_mul_f32 v%d, v%d, v%d' % (WB+r, a+r, RS))
        for r in range(16): e('v_exp_f32 v%d, v%d' % (WB+r, WB+r))
        for r in range(16): e('v_add_f32 v%d, 1.0, v%d' % (WB+r, WB+r))
        for r in range(16): e('v_rcp_f32 v%d, v%d' % (WB+r, WB+r))
        for r in range(16): e('v_mul_f32 v%d, v%d, v%d' % (a+r, a+r, WB+r))
        for q in range(8): e('v_cvt_pk_bf16_f32 v%d, v%d, v%d' % (96+8*(t & 1)+q, a+2*q, a+2*q+1))
        off = (t & 1)*2048
        if t == 2: e('s_add_u32 s35, s35, 4096')
        e('buffer_store_dwordx4 %s, v4, s[8:11], s35 offen offset:%d' % (vr(96+8*(t & 1), 4), off))
        e('buffer_store_dwordx4 %s, v4, s[8:11], s35 offen offset:%d' % (vr(100+8*(t & 1), 4), off+1024))
    e.lab(P + '_end')
    e('s_endpgm')
    return e.text()
W1_VGPR = 128; W1_AGPR = 112; W1_LDS = 114688
```

```python
from common import *
QSCALE = (DH ** -0.5) * math.log2(math.e)

def gen_prep(name='prep_kernel'):
    e = Em()
    e('s_cmp_ge_u32 s2, 288')
    e('s_cbranch_scc1 Lprep_end')
    e('s_load_dwordx4 s[4:7], s[0:1], 0')
    e('s_load_dwordx2 s[8:9], s[0:1], 16')
    e('s_load_dwordx2 s[10:11], s[0:1], 32')
    e('s_load_dwordx2 s[12:13], s[0:1], 40')
    e('s_load_dwordx2 s[14:15], s[0:1], 64')
    e('v_and_b32 v1, 63, v0')
    e('v_lshrrev_b32 v6, 6, v0')
    e('v_and_b32 v2, 31, v1')
    e('v_lshrrev_b32 v3, 5, v1')
    e('v_lshlrev_b32 v4, 4, v1')
    e('v_readfirstlane_b32 s24, v6')
    e('s_waitcnt lgkmcnt(0)')
    srd(e, 20, 14, 15, WS_BYTES)
    e('s_cmp_ge_u32 s2, 176')
    e('s_cbranch_scc1 Lprep_x')
    e('s_cmp_ge_u32 s2, 104')
    e('s_cbranch_scc1 Lprep_b')
    for i in range(48): assert (i*43) >> 7 == i//3
    e('s_cmp_ge_u32 s2, 48')
    e('s_cbranch_scc1 Lprep_w1')
    e('s_mul_i32 s25, s2, 43')
    e('s_lshr_b32 s25, s25, 7')
    e('s_mul_i32 s26, s25, 3')
    e('s_sub_u32 s26, s2, s26')
    e('s_mul_i32 s27, s26, 896')
    e('s_mul_i32 s28, s25, 56')
    e('s_add_u32 s27, s27, s28')
    e('s_movk_i32 s29, 2688')
    e('s_movk_i32 s30, 27')
    e('s_cmp_eq_u32 s26, 0')
    e('s_cselect_b32 s31, %s, 1.0' % hx(f32(QSCALE)))
    e('s_mul_i32 s32, s25, 86016')
    e('s_lshl_b32 s33, s26, 10')
    e('s_add_u32 s32, s32, s33')
    e('s_add_u32 s32, s32, %s' % hx(WQKV_F))
    e('s_movk_i32 s33, 3072')
    srd(e, 16, 6, 7, 448*2688)
    e('s_branch Lprep_a')
    e.lab('Lprep_w1')
    e('s_sub_u32 s25, s2, 48')
    e('s_lshl_b32 s27, s25, 6')
    e('s_movk_i32 s29, 3584')
    e('s_movk_i32 s30, 31')
    e('s_mov_b32 s31, 1.0')
    e('s_lshr_b32 s32, s25, 2')
    e('s_mul_i32 s32, s32, 114688')
    e('s_and_b32 s33, s25, 3')
    e('s_lshl_b32 s33, s33, 10')
    e('s_add_u32 s32, s32, s33')
    e('s_add_u32 s32, s32, %s' % hx(W1_F))
    e('s_movk_i32 s33, 4096')
    srd(e, 16, 10, 11, 448*3584)
    e.lab('Lprep_a')
    e('v_min_u32 v5, s30, v2')
    e('v_lshlrev_b32 v5, 1, v5')
    e('s_lshl_b32 s34, s29, 2')
    e('v_mul_lo_u32 v7, v3, s34')
    e('v_add_u32 v5, v5, v7')
    e('s_mul_i32 s35, s24, 112')
    e('s_mul_i32 s35, s35, s29')
    e('s_add_u32 s35, s35, s27')
    e('s_mul_i32 s36, s29, 5')
    for u in range(7):
        for j in range(8):
            e('buffer_load_ushort v%d, v5, s[16:19], s35 offen' % (16+8*u+j))
            e('s_add_u32 s35, s35, s%d' % (36 if (j & 3) == 3 else 29))
    e('v_mov_b32 v8, s31')
    e('v_cmp_ge_u32 vcc, s30, v2')
    e('s_nop 1')
    e('v_cndmask_b32 v8, 0, v8, vcc')
    e('s_waitcnt vmcnt(0)')
    for i in range(56):
        e('v_lshlrev_b32 v%d, 16, v%d' % (16+i, 16+i))
    e('v_mov_b32 v9, v16')
    for i in range(1, 56):
        e('v_add_f32 v9, v9, v%d' % (16+i))
    xhalf_sum(e, 9, 10)
    e('s_lshl_b32 s37, s24, 7')
    e('v_lshl_add_u32 v10, v2, 2, s37')
    e('ds_write_b32 v10, v9')
    e('s_waitcnt lgkmcnt(0)')
    e('s_barrier')
    e('v_lshlrev_b32 v10, 2, v2')
    e('ds_read_b32 v11, v10')
    e('ds_read_b32 v12, v10 offset:128')
    e('ds_read_b32 v13, v10 offset:256')
    e('ds_read_b32 v14, v10 offset:384')
    e('s_waitcnt lgkmcnt(0)')
    e('v_add_f32 v11, v11, v12')
    e('v_add_f32 v13, v13, v14')
    e('v_add_f32 v11, v11, v13')
    e('v_mul_f32 v11, %s, v11' % hx(f32(1.0/448)))
    for i in range(56):
        e('v_sub_f32 v%d, v%d, v11' % (16+i, 16+i))
        e('v_mul_f32 v%d, v%d, v8' % (16+i, 16+i))
    e('s_mul_i32 s37, s24, 7')
    e('s_mul_i32 s37, s37, s33')
    e('s_add_u32 s32, s32, s37')
    for u in range(7):
        for q in range(4):
            e('v_cvt_pk_bf16_f32 v%d, v%d, v%d' % (80+4*u+q, 16+8*u+2*q, 17+8*u+2*q))
        e('buffer_store_dwordx4 %s, v4, s[20:23], s32 offen' % vr(80+4*u, 4))
        e('s_add_u32 s32, s32, s33')
    e('s_branch Lprep_end')
    e.lab('Lprep_b')
    e('s_sub_u32 s25, s2, 104')
    e('s_lshl_b32 s25, s25, 2')
    e('s_add_u32 s25, s25, s24')
    e('v_mul_u32_u24 v5, 3584, v3')
    e('v_lshl_add_u32 v5, v2, 1, v5')
    e('s_cmp_ge_u32 s25, 64')
    e('s_cbranch_scc1 Lprep_w2')
    srd(e, 16, 8, 9, 448*896)
    e('s_mul_i32 s26, s25, 7')
    for u in range(7):
        e('s_add_u32 s27, s26, %d' % u)
        e('s_lshr_b32 s28, s27, 5')
        e('s_and_b32 s29, s27, 31')
        e('s_lshr_b32 s30, s29, 1')
        e('s_mul_i32 s30, s30, 28')
        e('s_and_b32 s31, s29, 1')
        e('s_lshl_b32 s31, s31, 4')
        e('s_add_u32 s30, s30, s31')
        e('s_mul_i32 s30, s30, 896')
        e('s_lshl_b32 s28, s28, 6')
        e('s_add_u32 s30, s30, s28')
        e('s_add_u32 s31, s30, %d' % (8*896))
        for j in range(8):
            e('buffer_load_ushort v%d, v5, s[16:19], s%d offen offset:%d' % (16+8*u+j, 30 if j < 4 else 31, (j & 3)*896))
    e('s_waitcnt vmcnt(0)')
    e('s_lshl_b32 s32, s26, 10')
    e('s_add_u32 s32, s32, %s' % hx(WO_F))
    for u in range(7):
        for q in range(4):
            e('v_lshl_or_b32 v%d, v%d, 16, v%d' % (80+4*u+q, 17+8*u+2*q, 16+8*u+2*q))
        e('s_add_u32 s27, s26, %d' % u)
        e('s_bitcmp1_b32 s27, 0')
        e('s_cselect_b32 s39, -1, 0')
        e('s_mov_b32 s38, 0')
        e('v_mov_b32 v10, 0')
        e('v_cndmask_b32 v%d, v%d, v10, s[38:39]' % (80+4*u+2, 80+4*u+2))
        e('v_cndmask_b32 v%d, v%d, v10, s[38:39]' % (80+4*u+3, 80+4*u+3))
        e('buffer_store_dwordx4 %s, v4, s[20:23], s32 offen offset:%d' % (vr(80+4*u, 4), 0))
        e('s_add_u32 s32, s32, 1024')
    e('s_branch Lprep_end')
    e.lab('Lprep_w2')
    srd(e, 16, 12, 13, 1792*896)
    e('s_sub_u32 s25, s25, 64')
    e('s_lshr_b32 s28, s25, 4')
    e('s_and_b32 s29, s25, 15')
    e('s_mul_i32 s30, s29, %d' % (7*16*896))
    e('s_lshl_b32 s28, s28, 6')
    e('s_add_u32 s30, s30, s28')
    for u in range(7):
        e('s_add_u32 s31, s30, %d' % (8*896))
        for j in range(8):
            e('buffer_load_ushort v%d, v5, s[16:19], s%d offen offset:%d' % (16+8*u+j, 30 if j < 4 else 31, (j & 3)*896))
        e('s_add_u32 s30, s30, %d' % (16*896))
    e('s_waitcnt vmcnt(0)')
    e('s_mul_i32 s32, s25, 7168')
    e('s_add_u32 s32, s32, %s' % hx(W2_F))
    for u in range(7):
        for q in range(4):
            e('v_lshl_or_b32 v%d, v%d, 16, v%d' % (80+4*u+q, 17+8*u+2*q, 16+8*u+2*q))
        e('buffer_store_dwordx4 %s, v4, s[20:23], s32 offen' % vr(80+4*u, 4))
        e('s_add_u32 s32, s32, 1024')
    e('s_branch Lprep_end')
    e.lab('Lprep_x')
    e('s_sub_u32 s25, s2, 176')
    e('s_lshl_b32 s25, s25, 2')
    e('s_add_u32 s25, s25, s24')
    for i in range(448): assert (i*9363) >> 16 == i//7
    e('s_mul_i32 s26, s25, 9363')
    e('s_lshr_b32 s26, s26, 16')
    e('s_mul_i32 s27, s26, 7')
    e('s_sub_u32 s27, s25, s27')
    srd(e, 16, 4, 5, 2048*896)
    e('v_mul_u32_u24 v5, 896, v2')
    e('v_lshl_add_u32 v5, v3, 3, v5')
    e('s_mul_i32 s28, s26, %d' % (32*896))
    e('s_lshl_b32 s29, s27, 7')
    e('s_add_u32 s28, s28, s29')
    for tt in range(2):
        for f in range(2):
            for jj in range(2):
                e('buffer_load_dwordx2 %s, v5, s[16:19], s28 offen offset:%d' % (vr(16+8*tt+4*f+2*jj, 2), 64*tt+32*f+16*jj))
    e('s_mul_i32 s30, s26, 28')
    e('s_lshl_b32 s31, s27, 2')
    e('s_add_u32 s30, s30, s31')
    e('s_lshl_b32 s30, s30, 10')
    e('s_add_u32 s30, s30, %s' % hx(X_F))
    e('s_waitcnt vmcnt(0)')
    for tt in range(2):
        for f in range(2):
            e('buffer_store_dwordx4 %s, v4, s[20:23], s30 offen offset:%d' % (vr(16+8*tt+4*f, 4), (2*tt+f)*1024))
    e('s_lshl_b32 s31, s27, 15')
    e('s_lshl_b32 s33, s26, 8')
    e('s_add_u32 s31, s31, s33')
    e('s_add_u32 s31, s31, %s' % hx(ST))
    e('v_lshlrev_b32 v6, 3, v2')
    for tt in range(2):
        e('v_mov_b32 v40, 0')
        e('v_mov_b32 v41, 0')
        for q in range(8):
            r = 16+8*tt+q
            e('v_lshlrev_b32 v42, 16, v%d' % r)
            e('v_and_b32 v43, 0xffff0000, v%d' % r)
            e('v_add_f32 v40, v40, v42')
            e('v_fmac_f32 v41, v42, v42')
            e('v_add_f32 v40, v40, v43')
            e('v_fmac_f32 v41, v43, v43')
        xhalf_sum(e, 40, 44)
        xhalf_sum(e, 41, 44)
        e('s_mov_b32 exec_hi, 0')
        e('buffer_store_dwordx2 v[40:41], v6, s[20:23], s31 offen')
        e('s_mov_b64 exec, -1')
        e('s_add_u32 s31, s31, 16384')
        if tt == 0: e('s_nop 1')
    e.lab('Lprep_end')
    e('s_endpgm')
    return e.text()
```

```python
from common import *

def gen_qkv(prefix='qkv'):
    e = Em()
    P = 'L' + prefix
    e.lab(P + '_body')
    e('s_cmp_ge_u32 s2, 256')
    e('s_cbranch_scc1 %s_end' % P)
    e('s_load_dwordx2 s[4:5], s[0:1], 64')
    e('v_and_b32 v1, 63, v0')
    e('v_lshrrev_b32 v6, 6, v0')
    e('v_and_b32 v2, 31, v1')
    e('v_lshrrev_b32 v3, 5, v1')
    e('v_readfirstlane_b32 s24, v6')
    e('v_lshlrev_b32 v4, 4, v1')
    e('s_and_b32 s25, s2, 7')
    e('s_lshl_b32 s25, s25, 1')
    e('s_bfe_u32 s26, s2, 0x10003')
    e('s_add_u32 s25, s25, s26')
    e('s_lshr_b32 s26, s2, 4')
    e('s_lshl_b32 s27, s25, 2')
    e('s_add_u32 s27, s27, s24')
    e('s_waitcnt lgkmcnt(0)')
    srd(e, 8, 4, 5, WS_BYTES)
    e('s_mul_i32 s28, s3, %s' % hx(2*ST_STRIDE))
    e('s_add_u32 s28, s28, %s' % hx(ST))
    e('s_lshl_b32 s29, s27, 8')
    e('s_add_u32 s28, s28, s29')
    e('v_lshlrev_b32 v5, 14, v3')
    e('v_lshl_add_u32 v5, v2, 3, v5')
    STV = 96
    stats_issue(e, STV, 5, 8, 29, 28)
    e('s_mul_i32 s30, s26, 86016')
    e('s_mul_i32 s31, s24, 3072')
    e('s_add_u32 s30, s30, s31')
    if WQKV_F: e('s_add_u32 s30, s30, %s' % hx(WQKV_F))
    e('s_mul_i32 s32, s3, %s' % hx(2*X_STRIDE))
    e('s_add_u32 s32, s32, %s' % hx(X_F))
    e('s_mul_i32 s33, s27, 28672')
    e('s_add_u32 s32, s32, s33')
    for s in range(7):
        e('s_mov_b32 m0, s31')
        e('s_add_u32 s31, s31, 12288')
        for i in range(3):
            e('buffer_load_dwordx4 v4, s[8:11], s30 offen offset:%d lds' % (i*1024))
        e('s_add_u32 s30, s30, 12288')
        for i in range(4):
            e('buffer_load_dwordx4 %s, v4, s[8:11], s32 offen offset:%d' % (ar(16*s+4*i, 4), i*1024))
        e('s_add_u32 s32, s32, 4096')
    ACC = 16
    WB = 64
    e('v_add_u32 v7, 43008, v4')
    def wread(ks):
        base = 'v4' if ks < 14 else 'v7'
        off = (ks % 14)*3072
        for sel in range(3):
            e('ds_read_b128 %s, %s offset:%d' % (vr(WB+12*(ks & 1)+4*sel, 4), base, off+sel*1024))
    e('s_waitcnt vmcnt(42)')
    e('s_barrier')
    wread(0)
    for ks in range(28):
        if ks+1 < 28:
            if (ks+1) % 4 == 0:
                e('s_waitcnt vmcnt(%d)' % (7*(6-(ks+1)//4)))
                e('s_barrier')
            wread(ks+1)
            e('s_waitcnt lgkmcnt(3)')
        else:
            e('s_waitcnt lgkmcnt(0)')
        b = WB+12*(ks & 1)
        x = ar(4*ks, 4)
        c = (lambda r: '0' if ks == 0 else vr(r, 16))
        mfma(e, vr(ACC, 16), vr(b, 4), x, c(ACC))
        mfma(e, vr(ACC+16, 16), vr(b+4, 4), x, c(ACC+16))
        mfma(e, vr(ACC+32, 16), x, vr(b+8, 4), c(ACC+32))
    RS = 90
    stats_finish(e, STV, RS, 91)
    e('s_lshl_b32 s34, s24, 7')
    e('s_add_u32 s34, s34, 86016')
    e('v_lshl_add_u32 v8, v2, 2, s34')
    e('ds_write_b32 v8, v%d' % RS)
    e('v_lshl_add_u32 v9, v3, 4, s34')
    e('s_waitcnt lgkmcnt(0)')
    for g in range(4):
        e('ds_read_b128 %s, v9 offset:%d' % (vr(64+4*g, 4), 32*g))
    e('s_mul_i32 s35, s3, %s' % hx(QKV_STRIDE))
    e('s_add_u32 s35, s35, %s' % hx(QKV_F))
    e('s_lshl_b32 s36, s26, 6')
    e('s_add_u32 s36, s36, s27')
    e('s_lshl_b32 s37, s36, 11')
    e('s_add_u32 s35, s35, s37')
    e('s_mul_i32 s38, s3, %s' % hx(NRM_STRIDE))
    e('s_add_u32 s38, s38, %s' % hx(NRM))
    e('s_lshl_b32 s37, s36, 2')
    e('s_add_u32 s38, s38, s37')
    for sel in range(2):
        a = ACC+16*sel
        for r in range(16):
            e('v_mul_f32 v%d, v%d, v%d' % (a+r, a+r, RS))
        e('v_mul_f32 v92, v%d, v%d' % (a, a))
        for r in range(1, 16):
            e('v_fmac_f32 v92, v%d, v%d' % (a+r, a+r))
        for q in range(8):
            e('v_cvt_pk_bf16_f32 v%d, v%d, v%d' % (96+8*sel+q, a+2*q, a+2*q+1))
        e('buffer_store_dwordx4 %s, v4, s[8:11], s35 offen' % vr(96+8*sel, 4))
        e('buffer_store_dwordx4 %s, v4, s[8:11], s35 offen offset:1024' % vr(100+8*sel, 4))
        e('s_add_u32 s35, s35, 0x200000')
        xhalf_sum(e, 92, 93)
        row16_max(e, 92, 93)
        e('s_nop 1')
        e('v_readlane_b32 s40, v92, 0')
        e('v_readlane_b32 s41, v92, 16')
        e('s_nop 3')
        e('s_max_u32 s40, s40, s41')
        e('v_mov_b32 v94, s40')
        e('v_mov_b32 v95, 0')
        e('s_mov_b64 s[42:43], exec')
        e('s_mov_b64 exec, 1')
        e('buffer_store_dword v94, v95, s[8:11], s38 offen')
        e('s_mov_b64 exec, s[42:43]')
        e('s_add_u32 s38, s38, 0x1000')
    a = ACC+32
    e('s_waitcnt lgkmcnt(0)')
    for r in range(16):
        e('v_mul_f32 v%d, v%d, v%d' % (a+r, a+r, 64+r))
    e('v_cmp_eq_u32 vcc, 28, v2')
    e('v_mov_b32 v92, 0')
    e('v_mov_b32 v93, 1.0')
    e('v_cndmask_b32 v92, v92, v93, vcc')
    e('v_cmp_le_u32 vcc, 28, v2')
    e('s_nop 1')
    for r in range(16):
        e('v_cndmask_b32 v%d, v%d, v92, vcc' % (a+r, a+r))
    for q in range(8):
        e('v_cvt_pk_bf16_f32 v%d, v%d, v%d' % (112+q, a+2*q, a+2*q+1))
    e('buffer_store_dwordx4 %s, v4, s[8:11], s35 offen' % vr(112, 4))
    e('buffer_store_dwordx4 %s, v4, s[8:11], s35 offen offset:1024' % vr(116, 4))
    e.lab(P + '_end')
    e('s_endpgm')
    return e.text()
QKV_VGPR = 128; QKV_AGPR = 112; QKV_LDS = 86016 + 512
```

```python
import sys
from common import *
import k_prep, k_qkv, k_attn, k_gemm
NAME = 'interleave_layers__softmax_full_mha__dense_activation_silu__prompt'
def build(extra_launches=0):
    launches = [('prep_kernel', 288, 512)]
    for l in range(2):
        launches += [('qkv%d_kernel' % l, 256, k_qkv.QKV_LDS), ('attn%d_kernel' % l, 256, k_attn.ATTN_LDS),
                     ('wo%d_kernel' % l, 224, k_gemm.KS_LDS), ('w1%d_kernel' % l, 224, k_gemm.W1_LDS),
                     ('w2%d_kernel' % l, 224, k_gemm.KS_LDS)]
    for i in range(extra_launches): launches.append(('nop_kernel', 1, 0))
    t = '; generated by my own Python generator (gen/gen1.py): multi-launch transformer forward\n'
    for n, g, lds in launches:
        t += '; @launch kernel=%s grid=(%d,1,1) block=(256,1,1) lds=%d\n' % (n, g, lds)
    t += '.amdgcn_target "amdgcn-amd-amdhsa--gfx950"\n.text\n'
    t += entry('prep_kernel') + k_prep.gen_prep()
    kds = kd('prep_kernel', 128, 128)
    if extra_launches:
        t += entry('nop_kernel') + '  s_endpgm\n'
        kds += kd('nop_kernel', 8, 8)
    bodies = {'qkv': (k_qkv.gen_qkv(), k_qkv.QKV_VGPR, k_qkv.QKV_AGPR),
              'attn': (k_attn.gen_attn(), k_attn.ATTN_VGPR, k_attn.ATTN_AGPR),
              'wo': (k_gemm.gen_ksplit('wo'), k_gemm.KS_VGPR, k_gemm.ks_agpr('wo')),
              'w1': (k_gemm.gen_w1(), k_gemm.W1_VGPR, k_gemm.W1_AGPR),
              'w2': (k_gemm.gen_ksplit('w2'), k_gemm.KS_VGPR, k_gemm.ks_agpr('w2'))}
    for n, (body, vg, ag) in bodies.items():
        t += entry('%s1_kernel' % n) + '  s_mov_b32 s3, 1\n  s_branch L%s_body\n' % n
        t += entry('%s0_kernel' % n) + '  s_mov_b32 s3, 0\n' + body
        for l in range(2): kds += kd('%s%d_kernel' % (n, l), vg+ag, vg)
    t += '.section .rodata,"a"\n' + kds
    return t
if __name__ == '__main__':
    out = sys.argv[1] if len(sys.argv) > 1 else 'cdna_kernels/%s.s' % NAME
    extra = int(sys.argv[2]) if len(sys.argv) > 2 else 0
    open(out, 'w').write(build(extra))
    print('wrote', out)
```
